```python
import torch

def _softmax(x, axis=-1):
    return torch.softmax(x, dim=axis)
def _gelu(x):
    return torch.nn.functional.gelu(x, approximate="tanh")
def _silu(x):
    return torch.nn.functional.silu(x)
def _sigmoid(x):
    return torch.sigmoid(x)
def _layernorm(x, axis=-1, eps=1e-5):
    m = x.mean(dim=axis, keepdim=True)
    v = x.var(dim=axis, keepdim=True, unbiased=False)
    return (x - m) / torch.sqrt(v + eps)
def _scatter_add(tgt, idx, src, axis=0):
    return tgt.clone().index_add_(axis, idx, src)
def _segment_sum(src, seg, n):
    out = torch.zeros((n,) + src.shape[1:], dtype=src.dtype)
    return out.index_add_(0, seg, src)
def _pad(x, pw):
    flat = tuple(v for pair in reversed(pw) for v in pair)
    return torch.nn.functional.pad(x, flat)

kernel_name = 'sequential_preLN__mha_block_cached__geglu_ffn__decode'

def setup_inputs():

    _w = (lambda a: (lambda t: t.to(torch.bfloat16) if t.is_floating_point() else t)(torch.as_tensor(a)))
    def _A_setup():
        B, Sq, D = 2, 1, 448
        H, Sk, Dh = 16, 8192, 256
        return {
            "x": _w((lambda *s: torch.randn(*s, dtype=torch.bfloat16) * 0.05)(B, Sq, D)),
            "k_cache": _w((lambda *s: torch.randn(*s, dtype=torch.bfloat16) * 3.2)(B, H, Sk, Dh)),
            "v_cache": _w((lambda *s: torch.randn(*s, dtype=torch.bfloat16) * 0.4)(B, H, Sk, Dh)),
            "wq": _w((lambda *s: torch.randn(*s, dtype=torch.bfloat16) * 3.2)(D, H * Dh) * (D ** -0.5)),
            "wo": _w((lambda *s: torch.randn(*s, dtype=torch.bfloat16) * 0.4)(H * Dh, D) * ((H * Dh) ** -0.5)),
        }
    _A_in = _A_setup()

    def _B_setup():
        B, S, D, F = 2, 1, 448, 1792
        return {
            "x": _w((lambda *s: torch.randn(*s, dtype=torch.bfloat16) * 0.05)(B, S, D)),
            "w_gate": _w((lambda *s: torch.randn(*s, dtype=torch.bfloat16) * 0.05)(D, F)),
            "w_up": _w((lambda *s: torch.randn(*s, dtype=torch.bfloat16) * 0.05)(D, F)),
            "w_down": _w((lambda *s: torch.randn(*s, dtype=torch.bfloat16) * 0.05)(F, D)),
        }
    _B_in = _B_setup()

    return {
        "A_x": _A_in["x"],
        "A_k_cache": _A_in["k_cache"],
        "A_v_cache": _A_in["v_cache"],
        "A_wq": _A_in["wq"],
        "A_wo": _A_in["wo"],
        "B_x": _B_in["x"],
        "B_w_gate": _B_in["w_gate"],
        "B_w_up": _B_in["w_up"],
        "B_w_down": _B_in["w_down"],
    }

def reference(A_x, A_k_cache, A_v_cache, A_wq, A_wo, B_x, B_w_gate, B_w_up, B_w_down):
    def _A_ref(x, k_cache, v_cache, wq, wo):
        B, Sq, D = x.shape
        H, Dh = 16, 256
        q = (lambda x, *d: x.permute(*d))((x @ wq).reshape(B, Sq, H, Dh), 0, 2, 1, 3)
        scores = torch.einsum("bhqd,bhkd->bhqk", q, k_cache) * (Dh ** -0.5)
        p = _softmax(scores, axis=-1)
        o = torch.einsum("bhqk,bhkd->bhqd", p, v_cache)
        return (lambda x, *d: x.permute(*d))(o, 0, 2, 1, 3).reshape(B, Sq, H * Dh) @ wo

    def _B_ref(x, w_gate, w_up, w_down):
        return (_gelu(x @ w_gate) * (x @ w_up)) @ w_down

    x = A_x
    h = x + _A_ref(_layernorm(x, axis=-1), A_k_cache, A_v_cache, A_wq, A_wo)
    h2 = h + _B_ref(_layernorm(h, axis=-1), B_w_gate, B_w_up, B_w_down)
    return h2
```

```python
import re
TRANS = ("v_exp_f32", "v_log_f32", "v_rcp_f32", "v_rsq_f32", "v_sqrt_f32", "v_sin_f32", "v_cos_f32")
def regs(tok):
    tok = tok.strip().lstrip("-").replace("abs(", "").replace("|", "").rstrip(")")
    m = re.fullmatch(r"([vsa])\[(\d+):(\d+)\]", tok)
    if m: return {f"{m.group(1)}{i}" for i in range(int(m.group(2)), int(m.group(3)) + 1)}
    if re.fullmatch(r"[vsa]\d+", tok): return {tok}
    if tok in ("vcc", "vcc_lo", "vcc_hi"): return {"vcc"}
    if tok in ("exec", "exec_lo", "exec_hi"): return {"exec"}
    if tok == "m0": return {"m0"}
    return set()
class I:
    def __init__(s, text):
        s.text = text
        t = text.split(";")[0].strip()
        s.label = t[:-1] if t.endswith(":") else None
        s.mn = None; s.w = set(); s.r = set(); s.ops = []
        if s.label or not t or t.startswith("."): return
        p = t.split(None, 1); s.mn = p[0]
        rest = p[1] if len(p) > 1 else ""
        ops = []; d = 0; cur = ""
        for ch in rest:
            if ch == "[": d += 1
            if ch == "]": d -= 1
            if ch == "," and d == 0: ops.append(cur.strip()); cur = ""
            else: cur += ch
        if cur.strip(): ops.append(cur.strip())
        s.mods = ""
        if ops:
            last = ops[-1].split(None, 1)
            ops[-1] = last[0]; s.mods = last[1] if len(last) > 1 else ""
        s.ops = ops
        mn = s.mn
        s.valu = mn.startswith("v_") and not mn.startswith("v_mfma")
        s.mfma = mn.startswith("v_mfma")
        s.salu = mn.startswith("s_")
        s.vmem = mn.startswith(("buffer_", "global_"))
        s.ds = mn.startswith("ds_")
        s.dpp = "_dpp" in mn or "quad_perm" in s.mods or "row_" in s.mods
        s.perm = mn.startswith("v_permlane")
        s.dot = mn.startswith("v_dot")
        s.trans = mn.replace("_e32", "").replace("_e64", "") in TRANS
        s.ldsdma = s.vmem and " lds" in (" " + s.mods)
        R = [regs(o) for o in ops]
        if s.mfma:
            s.w = R[0]; s.A = R[1]; s.B = R[2]; s.C = R[3]; s.r = R[1] | R[2] | R[3]
        elif s.valu:
            if s.perm: s.w = R[0] | R[1]; s.r = R[0] | R[1]
            elif mn.startswith("v_cmp"): s.w = R[0]; s.r = set().union(*R[1:])
            elif mn.startswith(("v_add_co", "v_addc_co", "v_sub_co")): s.w = R[0] | R[1]; s.r = set().union(*R[2:])
            else:
                s.w = R[0]; s.r = set().union(*R[1:]) if len(R) > 1 else set()
                if mn.startswith(("v_fmac", "v_dot2c", "v_writelane")) or s.dpp: s.r |= R[0]
        elif s.vmem:
            if "store" in mn: s.r = set().union(*R); s.data = R[0]
            elif "atomic" in mn: s.r = set().union(*R); s.w = R[0] if "sc0" in s.mods else set()
            elif s.ldsdma: s.r = set().union(*R) | {"m0"}
            else: s.w = R[0]; s.r = set().union(*R[1:])
        elif s.ds:
            if mn.startswith("ds_write"): s.r = set().union(*R)
            else: s.w = R[0]; s.r = set().union(*R[1:])
        elif s.salu:
            if mn.startswith(("s_cmp", "s_cbranch", "s_branch", "s_waitcnt", "s_nop", "s_barrier", "s_endpgm", "s_sleep", "s_setprio", "s_bitcmp")):
                s.r = set().union(*R) if R else set()
            else:
                s.w = R[0] if R else set(); s.r = set().union(*R[1:]) if len(R) > 1 else set()
                if "saveexec" in mn: s.w |= {"exec"}
    def states(s):
        if s.mn == "s_nop": return int(s.ops[0], 0) + 1
        return 1
def isv(x): return x[0] in "va" and x not in ("vcc",)
def need(p, c):
    n = 0
    pv = {x for x in p.w if isv(x)}; ps = p.w - pv
    if p.valu:
        if c.valu and c.dpp and pv & c.r: n = max(n, 2)
        if c.valu and c.perm and pv & c.r: n = max(n, 2)
        if c.mn.startswith(("v_readlane", "v_readfirstlane")) and pv & c.r: n = max(n, 1)
        if p.trans and (c.valu or c.mfma) and pv & c.r: n = max(n, 1)
        if (c.valu or c.mfma) and ps & c.r: n = max(n, 4 if c.mn.startswith(("v_readlane", "v_writelane")) else 2)
        if c.vmem and ps & c.r: n = max(n, 5)
        if c.mfma and pv & c.r: n = max(n, 2)
        if p.dot and pv & (c.r | c.w):
            same_c = c.mn == p.mn and not (pv & (regs(c.ops[1]) | regs(c.ops[2])))
            if not same_c: n = max(n, 3)
    if p.salu and "m0" in p.w and c.ldsdma: n = max(n, 1)
    if p.vmem and "store" in p.mn and ("x4" in p.mn or "x3" in p.mn) and p.data & c.w: n = max(n, 2)
    if p.mfma:
        ps_ = 8 if "32x32" in p.mn else 4
        tab = {4: (8, 6, 3), 8: (12, 10, 7)}[ps_]
        if c.mfma:
            if p.w & (c.A | c.B): n = max(n, tab[0])
            if p.w & c.C and not (p.w == c.C and p.mn == c.mn): n = max(n, tab[1])
            if p.w & c.w and p.w != c.C: n = max(n, tab[1])
        else:
            if p.w & (c.r | c.w): n = max(n, tab[0])
            if c.valu and p.C & c.w: n = max(n, tab[2])
    return n
class Asm:
    def __init__(s): s.L = []
    def __call__(s, *lines):
        for t in lines:
            for u in t.split("\n"):
                if u.strip(): s.L.append(u.strip())
    def finish(s):
        ins = [I(t) for t in s.L]
        out = []
        def required(hist, c):
            worst = 0; dist = 0
            for p in reversed(hist):
                if p.mn is None: continue
                worst = max(worst, need(p, c) - dist)
                dist += p.states()
                if dist >= 13: break
            return worst
        nn = 0
        for c in ins:
            if c.mn:
                k = required(out[-40:], c)
                if k > 0: out.append(I(f"s_nop {k-1}")); nn += 1
            out.append(c)
        changed = True
        while changed:
            changed = False
            lab = {x.label: i for i, x in enumerate(out) if x.label}
            for i, x in enumerate(out):
                if x.mn and x.mn.startswith(("s_cbranch", "s_branch")):
                    t = lab[x.ops[0]]
                    hist = out[max(0, i - 40):i + 1]
                    j = t + 1; cnt = 0
                    while j < len(out) and cnt < 13:
                        c = out[j]
                        if c.mn:
                            k = required(hist, c)
                            if k > 0:
                                out.insert(j, I(f"s_nop {k-1}")); nn += 1; changed = True; break
                            hist = hist + [c]; cnt += c.states()
                            if c.mn in ("s_branch", "s_endpgm"): break
                        j += 1
                    if changed: break
        s.nnops = nn
        return "\n".join((x.text if (x.label or x.text.startswith((".", ";"))) else "    " + x.text) for x in out) + "\n"
```

```python
import sys, math
from asmlib import Asm
NAME = "sequential_preLN__mha_block_cached__geglu_ffn__decode"
QOFF, MLOFF, OOFF, YOFF, ZOFF, WSUSED = 0x1000, 0xA000, 0x10000, 0x30000, 0x38000, 0x70000
STAMP_OFF = 1 << 20
L_S, L_Q, L_XN, L_GU, L_RED, L_H, L_WQ, L_W = 0, 4096, 4608, 6400, 7168, 11264, 15360, 29696
LDS_BYTES = L_W + 86016
TAGX = 0x9E3779B9
SPIN = 200000
def fbits(x):
    import struct
    return hex(struct.unpack("<I", struct.pack("<f", x))[0])

def gen(stamps=False, WP=8, KVF="nt", WF="nt", WQF="", WPACE=8):
    a = Asm()
    a(open("cdna_kernels/" + NAME + ".s.ref").read().split("; Override launch")[0])
    a(f"; @launch grid=(256,1,1) block=(320,1,1) lds={LDS_BYTES}", '.amdgcn_target "amdgcn-amd-amdhsa--gfx950"', ".text",
      f".globl {NAME}_kernel", ".p2align 8", f".type {NAME}_kernel,@function", f"{NAME}_kernel:")
    nst = [0]
    def stamp(i):
        if stamps:
            a("s_memrealtime s[62:63]", "s_waitcnt lgkmcnt(0)", f"s_mov_b32 s{64+i}, s62")
    def allreduce(op, regs, tmp, steps=6):
        for m in ["quad_perm:[1,0,3,2]", "quad_perm:[2,3,0,1]", "row_half_mirror", "row_mirror"]:
            for r in regs: a(f"{op}_dpp v{r}, v{r}, v{r} {m} row_mask:0xf bank_mask:0xf")
        for sw in ["v_permlane16_swap_b32", "v_permlane32_swap_b32"][:steps - 4]:
            for r, t in zip(regs, tmp): a(f"v_mov_b32 v{t}, v{r}")
            for r, t in zip(regs, tmp): a(f"{sw} v{r}, v{t}")
            for r, t in zip(regs, tmp): a(f"{op} v{r}, v{r}, v{t}")
    a("s_cmp_ge_u32 s2, 256", "s_cbranch_scc1 L_end")
    if stamps:
        for i in range(16): a(f"s_mov_b32 s{64+i}, 0")
    stamp(0)
    a("s_load_dwordx16 s[32:47], s[0:1], 0", "s_load_dwordx8 s[48:55], s[0:1], 64")
    a("v_lshrrev_b32 v1, 6, v0", "v_readfirstlane_b32 s3, v1", "v_and_b32 v1, 63, v0")
    a("s_mov_b32 s57, 0", "s_and_b32 s58, s2, 7", "s_lshr_b32 s59, s2, 3",
      "s_cmp_lt_u32 s2, 56", "s_cselect_b32 s57, 1, 0",
      "s_lshr_b32 s24, s2, 6", "s_cmp_lg_u32 s24, 1", "s_cbranch_scc1 L_role_done",
      "s_bfe_u32 s24, s2, 0x20004",
      "s_lshl_b32 s24, s24, 3", "s_add_u32 s24, s24, s58",
      "s_cmp_ge_u32 s24, 28", "s_cbranch_scc1 L_role_done",
      "s_mov_b32 s57, 2", "s_lshl_b32 s24, s24, 1", "s_bfe_u32 s25, s2, 0x10003", "s_add_u32 s58, s24, s25",
      "L_role_done:")
    a("s_lshl_b32 s24, s2, 19", "s_waitcnt lgkmcnt(0)")
    a("s_load_dword s56, s[54:55], 0")
    a("s_mov_b32 s8, s54", "s_mov_b32 s9, s55", f"s_mov_b32 s10, {hex(0x200000 if stamps else WSUSED)}", "s_mov_b32 s11, 0x20000")
    a("s_cmp_eq_u32 s3, 4", "s_cbranch_scc1 L_helper")
    a("s_add_u32 s4, s34, s24", "s_addc_u32 s5, s35, 0", "s_mov_b32 s6, 0x80000", "s_mov_b32 s7, 0x20000")
    a("s_add_u32 s20, s36, s24", "s_addc_u32 s21, s37, 0")
    a("s_lshl_b32 s23, s3, 10", "v_lshl_add_u32 v2, v1, 4, s23", "s_mov_b32 s22, 0")
    RING = 64
    def ld(slot):
        r = RING + 4 * slot
        a(f"buffer_load_dwordx4 v[{r}:{r+3}], v2, s[4:7], s22 offen {KVF}", "s_addk_i32 s22, 0x1000")
    for j in range(48):
        if j >= WP: a(f"s_waitcnt vmcnt({WP-1})")
        ld(j)
    a("v_lshrrev_b32 v3, 5, v1", "v_lshlrev_b32 v3, 9, v3", "v_add_u32 v3, s23, v3", "v_mov_b32 v62, v3",
      "v_bfe_u32 v8, v1, 2, 3", "v_lshl_add_u32 v3, v8, 2, v3")
    a("v_and_b32 v8, 31, v1", "v_lshlrev_b32 v8, 4, v8")
    stamp(1)
    a("s_barrier")
    a(f"ds_read_b128 v[4:7], v8 offset:{L_Q}", "s_waitcnt lgkmcnt(0)")
    a(f"s_xor_b32 s60, s56, {hex(TAGX)}")
    stamp(2)
    def kgroup(slot0, waits, issue, ldsoff):
        for jj in range(8):
            r = RING + 4 * (slot0 + jj)
            a(f"s_waitcnt vmcnt({waits[jj]})")
            a(f"v_dot2_f32_bf16 v{8+jj}, v{r}, v4, 0")
            for e in range(1, 4): a(f"v_dot2_f32_bf16 v{8+jj}, v{r+e}, v{4+e}, v{8+jj}")
            if issue: ld(slot0 + jj)
        for x in range(4): a(f"v_permlane16_swap_b32 v{8+x}, v{12+x}")
        for x in range(4): a(f"v_add_f32 v{8+x}, v{8+x}, v{12+x}")
        for x in range(2): a(f"v_add_f32_dpp v{8+x}, v{8+x}, v{8+x} row_ror:8 row_mask:0xf bank_mask:0x3")
        for x in range(2): a(f"v_add_f32_dpp v{8+x}, v{10+x}, v{10+x} row_ror:8 row_mask:0xf bank_mask:0xc")
        a("v_add_f32_dpp v8, v8, v8 row_half_mirror row_mask:0xf bank_mask:0x5")
        a("v_add_f32_dpp v8, v9, v9 row_half_mirror row_mask:0xf bank_mask:0xa")
        a("v_add_f32_dpp v8, v8, v8 quad_perm:[1,0,3,2] row_mask:0xf bank_mask:0xf")
        a("v_add_f32_dpp v8, v8, v8 quad_perm:[2,3,0,1] row_mask:0xf bank_mask:0xf")
        a(f"ds_write_b32 v3, v8 offset:{L_S + ldsoff}")
    for g in range(6):
        waits = [47 if n < 16 else 63 - n for n in range(8 * g, 8 * g + 8)]
        kgroup(8 * g, waits, g < 2, 32 * g)
    a("s_mov_b32 s24, 5", "L_kloop:")
    a("s_cmp_lg_u32 s24, 1", "s_cbranch_scc1 L_kgo", "s_mov_b32 s4, s20", "s_mov_b32 s5, s21", "s_mov_b32 s22, 0", "L_kgo:")
    kgroup(0, [15] * 8, True, 192); kgroup(8, [15] * 8, True, 224)
    a("v_add_u32 v3, 64, v3", "s_sub_u32 s24, s24, 1", "s_cmp_lg_u32 s24, 0", "s_cbranch_scc1 L_kloop")
    stamp(3)
    a(f"ds_read_b128 v[8:11], v2 offset:{L_S}", f"s_mov_b32 s24, {fbits(math.log2(math.e) / 16)}", "s_waitcnt lgkmcnt(0)")
    a("v_max_f32 v12, v8, v9", "v_max3_f32 v12, v10, v11, v12")
    allreduce("v_max_f32", [12], [13])
    a("v_mul_f32 v63, s24, v12")
    for i in range(4): a(f"v_fma_f32 v{8+i}, v{8+i}, s24, -v63")
    for i in range(4): a(f"v_exp_f32 v{8+i}, v{8+i}")
    a("v_cvt_pk_bf16_f32 v9, v8, v9", "v_cvt_pk_bf16_f32 v11, v10, v11")
    a("v_lshlrev_b32 v8, 16, v9", "v_and_b32 v9, 0xffff0000, v9", "v_lshlrev_b32 v10, 16, v11", "v_and_b32 v11, 0xffff0000, v11")
    a(f"ds_write_b128 v2, v[8:11] offset:{L_S}")
    a("v_add_f32 v14, v8, v9", "v_add_f32 v15, v10, v11", "v_add_f32 v14, v14, v15")
    allreduce("v_add_f32", [14], [13])
    a("v_mov_b32 v12, v63", "v_mov_b32 v13, s60", "v_mov_b32 v15, s60")
    a("s_lshl_b32 s24, s2, 6", "s_lshl_b32 s25, s3, 4", "s_add_u32 s24, s24, s25", f"s_add_u32 s24, s24, {MLOFF}")
    a("v_mov_b32 v16, 0", "s_mov_b64 exec, 1", "buffer_store_dwordx4 v[12:15], v16, s[8:11], s24 offen sc1", "s_mov_b64 exec, -1")
    for i in range(8): a(f"v_mov_b32 v{32+i}, 0")
    a("s_barrier")
    stamp(4)
    a("v_lshrrev_b32 v16, 4, v1", "v_lshlrev_b32 v16, 3, v16", "v_bfe_u32 v17, v1, 2, 2", "v_add_u32 v16, v16, v17",
      "v_and_b32 v17, 3, v1", "v_lshlrev_b32 v17, 3, v17")
    a("s_cmp_eq_u32 s57, 0", "s_cbranch_scc1 L_vstart", "s_cmp_eq_u32 s57, 2", "s_cbranch_scc1 L_pre_ffn")
    a("s_lshl_b32 s24, s3, 14", f"s_add_u32 s24, s24, {L_W}", "v_lshl_add_u32 v18, v16, 7, v17", "v_add_u32 v18, s24, v18")
    for st in range(4):
        for nt in range(4):
            for hf in range(2):
                r = 128 + (st * 4 + nt) * 4 + hf * 2
                a(f"ds_read_b64_tr_b16 v[{r}:{r+1}], v18 offset:{(st*32 + hf*4)*128 + nt*32}")
        a("s_waitcnt lgkmcnt(0)")
    a("s_branch L_vstart")
    a("L_pre_ffn:")
    a("s_lshr_b32 s24, s3, 1", "s_mul_i32 s24, s24, 28672", "s_and_b32 s25, s3, 1", "s_lshl_b32 s25, s25, 5", "s_add_u32 s24, s24, s25", f"s_add_u32 s24, s24, {L_W}")
    a("v_lshl_add_u32 v18, v16, 6, v17", "v_add_u32 v18, s24, v18")
    for st in range(14):
        for hf in range(2):
            r = 128 + st * 4 + hf * 2
            a(f"ds_read_b64_tr_b16 v[{r}:{r+1}], v18 offset:{(st*32 + hf*4)*64}")
        if st % 4 == 3: a("s_waitcnt lgkmcnt(0)")
    a("s_mul_i32 s24, s3, 224", f"s_add_u32 s24, s24, {L_W + 57344}", "v_mul_u32_u24 v18, 896, v16", "v_add3_u32 v18, v18, v17, s24")
    a("s_waitcnt lgkmcnt(0)")
    for t in range(7):
        for hf in range(2):
            r = 184 + t * 4 + hf * 2
            a(f"ds_read_b64_tr_b16 v[{r}:{r+1}], v18 offset:{hf*4*896 + t*32}")
    a("s_mov_b32 s12, s32", "s_mov_b32 s13, s33", "s_mov_b32 s14, 1792", "s_mov_b32 s15, 0x20000")
    a("s_and_b32 s24, s3, 1", "s_mul_i32 s24, s24, 896", "v_lshlrev_b32 v18, 4, v1", "v_mov_b32 v19, 0x10000", "v_cmp_gt_u32 vcc, 56, v1", "v_cndmask_b32 v18, v19, v18, vcc")
    a("buffer_load_dwordx4 v[24:27], v18, s[12:15], s24 offen")
    a("s_waitcnt lgkmcnt(0)")
    a("L_vstart:")
    a("s_lshr_b32 s24, s2, 3", "s_lshl_b32 s24, s24, 9", f"s_add_u32 s24, s24, {MLOFF}", "v_and_b32 v20, 31, v1", "v_lshl_add_u32 v20, v20, 4, s24")
    a("v_lshlrev_b32 v21, 6, v0", f"v_add_u32 v21, {MLOFF}, v21")
    def vblock(last):
        for i in range(4): a(f"ds_read_b128 v[{40+4*i}:{43+4*i}], v62 offset:{L_S + 16*i}")
        for j in range(16):
            r = RING + 4 * j
            if j % 4 == 0: a(f"s_waitcnt lgkmcnt({3 - j//4})")
            a(f"v_lshrrev_b32 v8, 16, v{40+j}")
            a(f"s_waitcnt vmcnt({15 - j if last else 15})")
            for e in range(4): a(f"v_dot2c_f32_bf16 v{33+2*e}, v{r+e}, v{40+j}")
            for e in range(4): a(f"v_dot2c_f32_bf16 v{32+2*e}, v{r+e}, v8")
            if not last: ld(j)
    a("s_mov_b32 s24, 7", "L_vloop:")
    a("s_cmp_lg_u32 s24, 1", "s_cbranch_scc1 L_vgo")
    a("buffer_load_dwordx4 v[56:59], v20, s[8:11], 0 offen sc1", "buffer_load_dwordx2 v[60:61], v21, s[8:11], 0 offen sc1")
    a("L_vgo:")
    vblock(False)
    a("v_add_u32 v62, 64, v62", "s_sub_u32 s24, s24, 1", "s_cmp_lg_u32 s24, 0", "s_cbranch_scc1 L_vloop")
    a("s_waitcnt vmcnt(16)", f"s_mov_b32 s61, {SPIN}")
    a("L_mlchk:")
    a("v_cmp_ne_u32 vcc, s60, v57", "v_cmp_ne_u32 s[24:25], s60, v59", "v_cmp_ne_u32 s[26:27], s60, v61",
      "s_or_b64 vcc, vcc, s[24:25]", "s_or_b64 vcc, vcc, s[26:27]", "s_cbranch_vccz L_mlok")
    a("buffer_load_dwordx4 v[56:59], v20, s[8:11], 0 offen sc1", "buffer_load_dwordx2 v[60:61], v21, s[8:11], 0 offen sc1",
      "s_sub_u32 s61, s61, 1", "s_cmp_lg_u32 s61, 0", "s_waitcnt vmcnt(0)", "s_cbranch_scc1 L_mlchk")
    a("L_mlok:")
    a("v_mov_b32 v8, v56")
    allreduce("v_max_f32", [8], [9], steps=5)
    a("v_sub_f32 v9, v56, v8", "v_sub_f32 v10, v63, v8", "v_exp_f32 v9, v9", "v_exp_f32 v10, v10", "v_mul_f32 v9, v9, v58")
    allreduce("v_add_f32", [9], [11], steps=5)
    a("v_rcp_f32 v9, v9", "v_mul_f32 v63, v10, v9")
    stamp(5)
    vblock(True)
    stamp(6)
    for e in range(4): a(f"v_permlane32_swap_b32 v{32+e}, v{36+e}")
    for e in range(4): a(f"v_add_f32 v{32+e}, v{32+e}, v{36+e}")
    for e in range(4): a(f"v_mul_f32 v{32+e}, v{32+e}, v63")
    a(f"ds_write_b128 v2, v[32:35] offset:{L_RED}")
    a("s_bfe_u32 s24, s2, 0x40003", "s_lshl_b32 s24, s24, 13", "s_lshr_b32 s25, s2, 7", "s_lshl_b32 s25, s25, 3", "s_and_b32 s26, s2, 7",
      "s_add_u32 s25, s25, s26", "s_lshl_b32 s25, s25, 9", "s_add_u32 s24, s24, s25", f"s_add_u32 s24, s24, {OOFF}")
    a("s_waitcnt lgkmcnt(0)", "s_barrier")
    a("s_cmp_lg_u32 s3, 0", "s_cbranch_scc1 L_opub_done")
    for k in range(1, 4): a(f"ds_read_b128 v[{8+4*k}:{11+4*k}], v2 offset:{L_RED + 1024*k}")
    a("s_waitcnt lgkmcnt(1)")
    for e in range(4): a(f"v_add_f32 v{12+e}, v{12+e}, v{16+e}")
    a("s_waitcnt lgkmcnt(0)")
    for e in range(4): a(f"v_add_f32 v{32+e}, v{32+e}, v{20+e}")
    for e in range(4): a(f"v_add_f32 v{32+e}, v{32+e}, v{12+e}")
    a("v_cvt_pk_bf16_f32 v8, v32, v33", "v_cvt_pk_bf16_f32 v9, v34, v35", "v_min_u32 v8, -2, v8", "v_min_u32 v9, -2, v9")
    a("v_permlane32_swap_b32 v8, v10", "v_permlane32_swap_b32 v9, v11")
    a("s_mov_b32 exec_hi, 0", "buffer_store_dwordx4 v[8:11], v2, s[8:11], s24 offen sc1", "s_mov_b64 exec, -1")
    a("L_opub_done:")
    stamp(7)
    a("s_cmp_eq_u32 s57, 0", "s_cbranch_scc1 L_exit", "s_cmp_eq_u32 s57, 2", "s_cbranch_scc1 L_ffn")
    a("s_lshl_b32 s24, s58, 14", "s_lshr_b32 s25, s3, 1", "s_lshl_b32 s25, s25, 13", "s_add_u32 s24, s24, s25",
      "s_and_b32 s25, s3, 1", "s_lshl_b32 s25, s25, 8", "s_add_u32 s24, s24, s25", f"s_add_u32 s24, s24, {OOFF}")
    a("v_and_b32 v16, 15, v1", "v_lshlrev_b32 v17, 9, v16", "v_lshrrev_b32 v18, 4, v1", "v_lshl_add_u32 v17, v18, 4, v17")
    a("v_lshrrev_b32 v19, 5, v1", "v_lshlrev_b32 v19, 8, v19", "v_and_b32 v18, 1, v18", "v_lshl_add_u32 v19, v18, 6, v19", "v_lshl_add_u32 v19, v16, 2, v19",
      "s_lshl_b32 s25, s3, 9", "v_add_u32 v19, s25, v19")
    a("v_bfe_u32 v20, v1, 4, 1", "v_mul_u32_u24 v20, 1792, v20", "v_lshl_add_u32 v20, v16, 4, v20",
      "s_mul_i32 s26, s58, 3584", "s_lshl_b32 s27, s59, 8", "s_add_u32 s26, s26, s27", f"s_add_u32 s26, s26, {YOFF}")
    a(f"s_mov_b32 s61, {SPIN}", "L_opoll:")
    for st in range(4): a(f"buffer_load_dwordx4 v[{64+4*st}:{67+4*st}], v17, s[8:11], s24 offen offset:{64*st} sc1")
    a("s_sub_u32 s61, s61, 1", "s_cmp_eq_u32 s61, 0", "s_cbranch_scc1 L_oto")
    a("s_waitcnt vmcnt(2)", "v_max3_u32 v8, v64, v65, v66", "v_max3_u32 v9, v67, v68, v69", "v_max3_u32 v8, v70, v71, v8",
      "s_waitcnt vmcnt(0)", "v_max3_u32 v9, v72, v73, v9", "v_max3_u32 v8, v74, v75, v8", "v_max3_u32 v9, v76, v77, v9", "v_max3_u32 v8, v78, v79, v8",
      "v_max_u32 v8, v8, v9", "v_cmp_eq_u32 vcc, -1, v8", "s_cbranch_vccnz L_opoll")
    a("L_oto:", "s_waitcnt vmcnt(0)")
    stamp(8)
    for st in range(4):
        for nt in range(4):
            r = 128 + (st * 4 + nt) * 4; d = 80 + 4 * nt
            a(f"v_mfma_f32_16x16x32_bf16 v[{d}:{d+3}], v[{64+4*st}:{67+4*st}], v[{r}:{r+3}], " + ("0" if st == 0 else f"v[{d}:{d+3}]"))
    for nt in range(4):
        d = 80 + 4 * nt
        a(f"v_add_f32 v{d}, v{d}, v{d+1}", f"v_add_f32 v{d+2}, v{d+2}, v{d+3}")
    for nt in range(4): a(f"v_add_f32 v{8+nt}, v{80+4*nt}, v{82+4*nt}")
    a("v_permlane16_swap_b32 v8, v9", "v_permlane16_swap_b32 v10, v11", "v_add_f32 v8, v8, v9", "v_add_f32 v10, v10, v11")
    a(f"ds_write_b32 v19, v8 offset:{L_S}", f"ds_write_b32 v19, v10 offset:{L_S + 128}", "s_waitcnt lgkmcnt(0)", "s_barrier")
    a("s_cmp_lg_u32 s3, 0", "s_cbranch_scc1 L_exit")
    for k in range(4): a(f"ds_read_b128 v[{64+4*k}:{67+4*k}], v2 offset:{L_S + 512*k}")
    a("s_waitcnt lgkmcnt(2)")
    for e in range(4): a(f"v_add_f32 v{64+e}, v{64+e}, v{68+e}")
    a("s_waitcnt lgkmcnt(0)")
    for e in range(4): a(f"v_add_f32 v{72+e}, v{72+e}, v{76+e}")
    for e in range(4): a(f"v_add_f32 v{64+e}, v{64+e}, v{72+e}")
    a("s_mov_b32 exec_hi, 0", "buffer_store_dwordx4 v[64:67], v20, s[8:11], s26 offen sc1", "s_mov_b64 exec, -1")
    stamp(9)
    a("s_branch L_exit")
    a("L_ffn:")
    a("v_lshrrev_b32 v16, 4, v1")
    a("v_bfe_u32 v17, v1, 2, 1", "v_mul_u32_u24 v17, 896, v17", "v_lshl_add_u32 v17, v16, 4, v17")
    a("s_lshr_b32 s24, s3, 1", "s_lshl_b32 s24, s24, 8", "s_and_b32 s25, s3, 1", "s_lshl_b32 s25, s25, 6", "s_add_u32 s24, s24, s25",
      "v_and_b32 v18, 1, v16", "v_lshlrev_b32 v18, 7, v18", "v_and_b32 v19, 15, v1", "v_lshl_add_u32 v18, v19, 2, v18", "v_add_u32 v18, s24, v18")
    a("v_and_b32 v20, 1, v1", "v_lshlrev_b32 v19, 7, v20", "v_lshl_add_u32 v19, v16, 5, v19",
      "v_mul_u32_u24 v20, 1792, v20", "v_lshl_add_u32 v20, v16, 4, v20",
      "s_mul_i32 s26, s58, 3584", "s_mul_i32 s27, s3, 448", "s_add_u32 s26, s26, s27", f"s_add_u32 s26, s26, {ZOFF}")
    a("s_lshl_b32 s28, s58, 2", "s_add_u32 s28, s28, s3", "s_lshl_b32 s27, s28, 4", f"s_add_u32 s27, s27, {ZOFF}",
      "v_mul_u32_u24 v21, 3584, v1", "v_mov_b32 v23, 0x7fff0000", "v_cmp_gt_u32 vcc, 56, v1", "v_cndmask_b32 v21, v23, v21, vcc",
      "s_lshl_b32 s28, s28, 2", "v_add_u32 v22, s28, v16")
    a("s_cmp_ge_u32 s3, 2", "s_cbranch_scc1 L_ffn_b")
    a("v_lshlrev_b32 v28, 5, v1", "v_cndmask_b32 v28, v23, v28, vcc")
    a("s_mul_i32 s24, s3, 1792", f"s_add_u32 s24, s24, {YOFF}")
    for e in range(4): a(f"v_lshlrev_b32 v{32+2*e}, 16, v{24+e}", f"v_and_b32 v{33+2*e}, 0xffff0000, v{24+e}")
    a(f"s_mov_b32 s61, {SPIN}", f"s_mov_b32 s29, {fbits(1/448)}", "L_ypoll:")
    a("s_mov_b32 s25, s24")
    for kq in range(8):
        for hf in range(2):
            r = 64 + kq * 8 + hf * 4
            a(f"buffer_load_dwordx4 v[{r}:{r+3}], v28, s[8:11], s25 offen offset:{16*hf} sc1")
        if kq < 7: a("s_addk_i32 s25, 3584")
    for pr in range(4):
        a(f"s_waitcnt vmcnt({12 - 4*pr})")
        for e in range(0, 8, 2):
            r = 64 + pr * 16 + e
            a(f"v_pk_add_f32 v[{r}:{r+1}], v[{r}:{r+1}], v[{r+8}:{r+9}]")
        for e in range(0, 8, 2):
            r = 64 + pr * 16 + e
            src = 32 + e if pr == 0 else 8 + e
            a(f"v_pk_add_f32 v[{8+e}:{9+e}], v[{src}:{src+1}], v[{r}:{r+1}]")
    a("v_pk_add_f32 v[40:41], v[8:9], v[10:11]", "v_pk_add_f32 v[42:43], v[12:13], v[14:15]", "v_pk_add_f32 v[40:41], v[40:41], v[42:43]", "v_add_f32 v40, v40, v41")
    allreduce("v_add_f32", [40], [41])
    a("s_sub_u32 s61, s61, 1", "s_cmp_eq_u32 s61, 0", "s_cbranch_scc1 L_yto")
    a("v_cmp_u_f32 vcc, v40, v40", "s_cbranch_vccnz L_ypoll")
    a("L_yto:")
    stamp(8)
    a("v_mul_f32 v40, s29, v40", "v_mov_b32 v42, 0", "s_mul_i32 s24, s3, 1792", "v_lshl_add_u32 v29, v1, 5, s24",
      "s_lshr_b32 s24, s24, 1", "v_lshl_add_u32 v30, v1, 4, s24")
    a("s_mov_b32 exec_lo, -1", "s_mov_b32 exec_hi, 0x00ffffff")
    a(f"ds_write_b128 v29, v[8:11] offset:{L_H}", f"ds_write_b128 v29, v[12:15] offset:{L_H + 16}")
    for e in range(8): a(f"v_sub_f32 v{44+e}, v{8+e}, v40")
    a("v_mul_f32 v42, v44, v44", "v_mul_f32 v43, v45, v45")
    for e in range(2, 8): a(f"v_fmac_f32 v{42 + e%2}, v{44+e}, v{44+e}")
    a("v_add_f32 v42, v42, v43", "s_mov_b64 exec, -1")
    allreduce("v_add_f32", [42], [41])
    a(f"v_mov_b32 v41, {fbits(1e-5)}", "v_fmac_f32 v41, s29, v42", "v_rsq_f32 v41, v41")
    for e in range(8): a(f"v_mul_f32 v{44+e}, v{44+e}, v41")
    for e in range(4): a(f"v_cvt_pk_bf16_f32 v{44+e}, v{44+2*e}, v{45+2*e}")
    a("s_mov_b32 exec_hi, 0x00ffffff", f"ds_write_b128 v30, v[44:47] offset:{L_XN}", "s_mov_b64 exec, -1", "s_waitcnt lgkmcnt(0)")
    a("L_ffn_b:", "s_barrier")
    stamp(9)
    for st in range(14): a(f"ds_read_b128 v[{64+4*st}:{67+4*st}], v17 offset:{L_XN + 64*st}")
    a("v_lshlrev_b32 v23, 2, v22", f"ds_read_b32 v31, v23 offset:{L_H}")
    for st in range(14):
        a(f"s_waitcnt lgkmcnt({14 - st})")
        a(f"v_mfma_f32_16x16x32_bf16 v[8:11], v[{64+4*st}:{67+4*st}], v[{128+4*st}:{131+4*st}], " + ("0" if st == 0 else "v[8:11]"))
    c0 = -2 * math.log2(math.e) * math.sqrt(2 / math.pi)
    a(f"s_mov_b32 s24, {fbits(c0 * 0.044715)}", f"v_mov_b32 v13, {fbits(c0)}")
    a("s_cmp_ge_u32 s3, 2", "s_cbranch_scc1 L_nogelu")
    a("v_mul_f32 v12, v8, v8", "v_fmac_f32 v13, s24, v12", "v_mul_f32 v13, v13, v8", "v_exp_f32 v13, v13", "v_add_f32 v13, 1.0, v13", "v_rcp_f32 v13, v13", "v_mul_f32 v8, v8, v13")
    a("L_nogelu:")
    a(f"ds_write_b32 v18, v8 offset:{L_GU}", "s_waitcnt lgkmcnt(0)", "s_barrier")
    for i in range(2): a(f"ds_read_b128 v[{32+4*i}:{35+4*i}], v19 offset:{L_GU + 16*i}", f"ds_read_b128 v[{40+4*i}:{43+4*i}], v19 offset:{L_GU + 256 + 16*i}")
    for i in range(2):
        a(f"s_waitcnt lgkmcnt({2 - 2*i})")
        for e in range(4): a(f"v_mul_f32 v{32+4*i+e}, v{32+4*i+e}, v{40+4*i+e}")
        for e in range(2): a(f"v_cvt_pk_bf16_f32 v{8+2*i+e}, v{32+4*i+2*e}, v{33+4*i+2*e}")
    for t in range(7): a(f"v_mfma_f32_16x16x32_bf16 v[{64+4*t}:{67+4*t}], v[{184+4*t}:{187+4*t}], v[8:11], 0")
    a("s_mov_b32 exec_lo, 0x00030003", "s_mov_b32 exec_hi, 0x00030003")
    for t in range(7): a(f"buffer_store_dwordx4 v[{64+4*t}:{67+4*t}], v20, s[8:11], s26 offen offset:{64*t} sc1")
    a("s_mov_b64 exec, -1")
    stamp(10)
    a("s_mov_b32 s12, s50", "s_mov_b32 s13, s51", "s_mov_b32 s14, 1792", "s_mov_b32 s15, 0x20000", "v_lshlrev_b32 v23, 1, v22")
    a(f"s_mov_b32 s61, {SPIN}", "L_zpoll:")
    a("buffer_load_dwordx4 v[12:15], v21, s[8:11], s27 offen sc1")
    a("s_sub_u32 s61, s61, 1", "s_cmp_eq_u32 s61, 0", "s_cbranch_scc1 L_zto")
    a("s_waitcnt vmcnt(0)", "v_max3_u32 v8, v12, v13, v14", "v_max_u32 v8, v8, v15", "v_cmp_eq_u32 vcc, -1, v8", "s_cbranch_vccnz L_zpoll")
    a("L_zto:", "s_waitcnt vmcnt(0)")
    stamp(11)
    a("v_permlane32_swap_b32 v12, v14", "v_permlane32_swap_b32 v13, v15", "v_add_f32 v12, v12, v14", "v_add_f32 v13, v13, v15",
      "v_permlane16_swap_b32 v12, v13", "v_add_f32 v12, v12, v13")
    allreduce("v_add_f32", [12], [13], steps=4)
    a("v_add_f32 v12, v12, v31", "v_cvt_pk_bf16_f32 v12, v12, v12")
    a("s_mov_b32 exec_lo, 0x00010001", "s_mov_b32 exec_hi, 0x00010001", "buffer_store_short v12, v23, s[12:15], 0 offen", "s_mov_b64 exec, -1")
    a("s_cmp_lg_u32 s28, 0", "s_cbranch_scc1 L_exit")
    a("s_add_u32 s24, s56, 1", "v_mov_b32 v8, s24", "v_mov_b32 v9, 0", "s_mov_b64 exec, 1", "buffer_store_dword v8, v9, s[8:11], 0 offen sc1", "s_mov_b64 exec, -1")
    a("s_branch L_exit")
    a("L_helper:")
    a("s_mov_b32 s12, s32", "s_mov_b32 s13, s33", "s_mov_b32 s14, 1792", "s_mov_b32 s15, 0x20000")
    a("v_lshlrev_b32 v2, 4, v1", "v_mov_b32 v3, 0x10000", "v_cmp_gt_u32 vcc, 56, v1", "v_cndmask_b32 v3, v3, v2, vcc")
    a("buffer_load_dwordx4 v[8:11], v3, s[12:15], 0 offen", "buffer_load_dwordx4 v[12:15], v3, s[12:15], 0 offen offset:896")
    a("s_and_b32 s29, s2, 63", "s_lshl_b32 s29, s29, 2", "s_lshr_b32 s24, s2, 6", "s_or_b32 s29, s29, s24", "s_lshl_b32 s24, s29, 5")
    a("s_add_u32 s16, s38, s24", "s_addc_u32 s17, s39, 0", f"s_sub_u32 s18, {448*8192}, s24", "s_mov_b32 s19, 0x20000")
    a("v_lshrrev_b32 v4, 1, v1", "v_lshlrev_b32 v4, 13, v4", "v_and_b32 v5, 1, v1", "v_lshl_add_u32 v4, v5, 4, v4")
    a("s_mov_b32 s24, 0")
    for i in range(14):
        a(f"s_mov_b32 m0, {L_WQ + 1024*i}", f"buffer_load_dwordx4 v4, s[16:19], s24 offen {WQF} lds", "s_add_u32 s24, s24, 0x40000")
    for i in range(4): a(f"v_mov_b32 v{16+i}, -1")
    a("s_bfe_u32 s24, s2, 0x40003", "s_lshl_b32 s24, s24, 13", "s_lshr_b32 s25, s2, 7", "s_lshl_b32 s25, s25, 3", "s_and_b32 s26, s2, 7",
      "s_add_u32 s25, s25, s26", "s_lshl_b32 s25, s25, 9", "s_add_u32 s24, s24, s25", f"s_add_u32 s24, s24, {OOFF}")
    a("s_mov_b32 exec_hi, 0", "buffer_store_dwordx4 v[16:19], v2, s[8:11], s24 offen sc1", "s_mov_b64 exec, -1")
    a("s_waitcnt vmcnt(15)")
    for bb in range(2):
        for e in range(4): a(f"v_lshlrev_b32 v{32+8*bb+2*e}, 16, v{8+4*bb+e}", f"v_and_b32 v{33+8*bb+2*e}, 0xffff0000, v{8+4*bb+e}")
    for bb in range(2):
        a(f"v_add_f32 v{20+bb}, v{32+8*bb}, v{33+8*bb}")
        for e in range(2, 8): a(f"v_add_f32 v{20+bb}, v{20+bb}, v{32+8*bb+e}")
    allreduce("v_add_f32", [20, 21], [22, 23])
    a(f"s_mov_b32 s28, {fbits(1/448)}", "v_mul_f32 v20, s28, v20", "v_mul_f32 v21, s28, v21", "v_mov_b32 v24, 0", "v_mov_b32 v25, 0")
    a("s_mov_b32 exec_hi, 0x00ffffff")
    for bb in range(2):
        for e in range(8): a(f"v_sub_f32 v{32+8*bb+e}, v{32+8*bb+e}, v{20+bb}")
        for e in range(8): a(f"v_fmac_f32 v{24+bb}, v{32+8*bb+e}, v{32+8*bb+e}")
    a("s_mov_b64 exec, -1")
    allreduce("v_add_f32", [24, 25], [22, 23])
    a(f"v_mov_b32 v20, {fbits(1e-5)}", f"v_mov_b32 v21, {fbits(1e-5)}", "v_fmac_f32 v20, s28, v24", "v_fmac_f32 v21, s28, v25", "v_rsq_f32 v20, v20", "v_rsq_f32 v21, v21")
    for bb in range(2):
        for e in range(8): a(f"v_mul_f32 v{32+8*bb+e}, v{32+8*bb+e}, v{20+bb}")
        for e in range(4): a(f"v_cvt_pk_bf16_f32 v{8+4*bb+e}, v{32+8*bb+2*e}, v{33+8*bb+2*e}")
    a("s_mov_b32 exec_hi, 0x00ffffff", f"ds_write_b128 v2, v[8:11] offset:{L_XN}", f"ds_write_b128 v2, v[12:15] offset:{L_XN + 896}", "s_mov_b64 exec, -1", "s_waitcnt lgkmcnt(0)")
    a("v_lshrrev_b32 v6, 4, v1", "v_mul_u32_u24 v7, 896, v5", "v_lshl_add_u32 v7, v6, 4, v7")
    a("v_lshlrev_b32 v26, 8, v6", "v_and_b32 v27, 15, v1", "v_lshl_add_u32 v26, v27, 3, v26")
    for st in range(14): a(f"ds_read_b128 v[{64+4*st}:{67+4*st}], v7 offset:{L_XN + 64*st}")
    a("s_waitcnt vmcnt(1) lgkmcnt(0)")
    stamp(1)
    for st in range(14):
        for hf in range(2):
            r = 128 + 4 * st + 2 * hf
            a(f"ds_read_b64_tr_b16 v[{r}:{r+1}], v26 offset:{L_WQ + 1024*st + 128*hf}")
        if st == 6: a("s_waitcnt lgkmcnt(0)")
    a(f"s_xor_b32 s60, s56, {hex(TAGX)}")
    for st in range(14):
        if st >= 7: a(f"s_waitcnt lgkmcnt({2*(13-st)})")
        a(f"v_mfma_f32_16x16x32_bf16 v[8:11], v[{128+4*st}:{131+4*st}], v[{64+4*st}:{67+4*st}], " + ("0" if st == 0 else "v[8:11]"))
    a("v_lshlrev_b32 v28, 14, v5", "v_lshl_add_u32 v28, v6, 4, v28", "s_lshl_b32 s24, s29, 6", f"s_add_u32 s24, s24, {QOFF}")
    a("v_mov_b32 v13, s60", "v_mov_b32 v15, s60", "v_cvt_pk_bf16_f32 v12, v8, v9", "v_cvt_pk_bf16_f32 v14, v10, v11")
    a("s_mov_b32 exec_lo, 0x00030003", "s_mov_b32 exec_hi, 0x00030003", "buffer_store_dwordx4 v[12:15], v28, s[8:11], s24 offen sc1", "s_mov_b64 exec, -1")
    stamp(2)
    a("s_cmp_eq_u32 s57, 0", "s_cbranch_scc1 L_qpoll0", "s_cmp_eq_u32 s57, 2", "s_cbranch_scc1 L_clr_ffn")
    a("v_bfe_u32 v20, v1, 4, 1", "v_mul_u32_u24 v20, 1792, v20", "v_lshl_add_u32 v20, v27, 4, v20",
      "s_mul_i32 s26, s58, 3584", "s_lshl_b32 s27, s59, 8", "s_add_u32 s26, s26, s27", f"s_add_u32 s26, s26, {YOFF}")
    a("s_mov_b32 exec_hi, 0", "buffer_store_dwordx4 v[16:19], v20, s[8:11], s26 offen sc1", "s_mov_b64 exec, -1", "s_branch L_qpoll0")
    a("L_clr_ffn:", "s_mul_i32 s26, s58, 3584", f"s_add_u32 s26, s26, {ZOFF}")
    for i in range(3): a(f"buffer_store_dwordx4 v[16:19], v2, s[8:11], s26 offen offset:{1024*i} sc1")
    a("s_mov_b32 exec_hi, 0", "buffer_store_dwordx4 v[16:19], v2, s[8:11], s26 offen offset:3072 sc1", "s_mov_b64 exec, -1")
    a("L_qpoll0:")
    a("s_lshr_b32 s24, s2, 3", "s_lshl_b32 s24, s24, 10", f"s_add_u32 s24, s24, {QOFF}", f"s_mov_b32 s61, {SPIN}")
    a("L_qpoll:", "buffer_load_dwordx4 v[8:11], v2, s[8:11], s24 offen sc1")
    a("s_sub_u32 s61, s61, 1", "s_cmp_eq_u32 s61, 0", "s_cbranch_scc1 L_qto")
    a("s_waitcnt vmcnt(0)", "v_cmp_ne_u32 vcc, s60, v9", "v_cmp_ne_u32 s[26:27], s60, v11", "s_or_b64 vcc, vcc, s[26:27]", "s_cbranch_vccnz L_qpoll")
    a("L_qto:", "s_waitcnt vmcnt(0)", "v_mov_b32 v9, v10", "v_lshlrev_b32 v3, 3, v1", f"ds_write_b64 v3, v[8:9] offset:{L_Q}", "s_waitcnt lgkmcnt(0)")
    stamp(3)
    a("s_barrier")
    a("s_cmp_eq_u32 s57, 0", "s_cbranch_scc1 L_hdone", "s_cmp_eq_u32 s57, 2", "s_cbranch_scc1 L_w_ffn")
    def dma_loop(lbl, n, sstep, ldsbase):
        a("s_mov_b32 s24, 0", f"s_mov_b32 m0, {ldsbase}", f"s_mov_b32 s25, {n}", f"{lbl}:",
          f"buffer_load_dwordx4 v4, s[16:19], s24 offen {WF} lds", f"s_add_u32 s24, s24, {sstep}", "s_add_u32 m0, m0, 1024",
          "s_sub_u32 s25, s25, 1", f"s_waitcnt vmcnt({WPACE-1})", "s_cmp_lg_u32 s25, 0", f"s_cbranch_scc1 {lbl}")
    a("s_mul_i32 s24, s58, 458752", "s_lshl_b32 s25, s59, 7", "s_add_u32 s24, s24, s25",
      "s_add_u32 s16, s40, s24", "s_addc_u32 s17, s41, 0", f"s_sub_u32 s18, {4096*896}, s24")
    a("v_lshrrev_b32 v4, 3, v1", "v_mul_u32_u24 v4, 896, v4", "v_and_b32 v5, 7, v1", "v_lshl_add_u32 v4, v5, 4, v4")
    dma_loop("L_wwo", 64, 7168, L_W)
    a("s_branch L_hdone")
    a("L_w_ffn:")
    a("s_lshl_b32 s26, s58, 6", "s_add_u32 s16, s44, s26", "s_addc_u32 s17, s45, 0", f"s_sub_u32 s18, {448*3584}, s26")
    a("v_lshrrev_b32 v4, 2, v1", "v_mul_u32_u24 v4, 3584, v4", "v_and_b32 v5, 3, v1", "v_lshl_add_u32 v4, v5, 4, v4")
    dma_loop("L_wg", 28, 16 * 3584, L_W)
    a("s_add_u32 s16, s46, s26", "s_addc_u32 s17, s47, 0")
    dma_loop("L_wu", 28, 16 * 3584, L_W + 28672)
    a("s_mul_i32 s26, s58, 28672", "s_add_u32 s16, s48, s26", "s_addc_u32 s17, s49, 0", "s_mov_b32 s18, 28672", "v_mov_b32 v4, v2")
    dma_loop("L_wd", 28, 1024, L_W + 57344)
    a("L_hdone:", "s_waitcnt vmcnt(0)")
    stamp(4)
    a("s_barrier")
    a("L_exit:")
    if stamps:
        stamp(15)
        a("s_getreg_b32 s78, hwreg(HW_REG_XCC_ID)")
        a("s_mul_i32 s24, s2, 5", "s_add_u32 s24, s24, s3", "s_lshl_b32 s24, s24, 6", f"s_add_u32 s24, s24, {STAMP_OFF}", "v_mov_b32 v0, 0")
        for i in range(16): a(f"v_mov_b32 v{8+i}, s{64+i}")
        a("s_mov_b64 exec, 1")
        for i in range(4): a(f"buffer_store_dwordx4 v[{8+4*i}:{11+4*i}], v0, s[8:11], s24 offen offset:{16*i}")
    a("L_end:", "s_endpgm")
    a('.section .rodata,"a"', ".p2align 6", f".amdhsa_kernel {NAME}_kernel",
      ".amdhsa_next_free_vgpr 256", ".amdhsa_next_free_sgpr 96", ".amdhsa_accum_offset 256", ".amdhsa_group_segment_fixed_size 0",
      ".amdhsa_kernarg_size 96", ".amdhsa_user_sgpr_count 2", ".amdhsa_user_sgpr_kernarg_segment_ptr 1",
      ".amdhsa_system_sgpr_workgroup_id_x 1", ".end_amdhsa_kernel")
    return a.finish()
if __name__ == "__main__":
    open("k1.s", "w").write(gen())
    open("k1_st.s", "w").write(gen(stamps=True))
ALL = list(range(256)); WO = list(range(56)); FF = [w for w in range(64, 128) if ((w >> 4) & 3) * 8 + (w & 7) < 28]
SW = [0, 1, 2, 3]
STATS = [("start", ALL, SW, 0), ("helper wq landed", ALL, [4], 1), ("helper q published", ALL, [4], 2), ("helper q polled", ALL, [4], 3),
         ("stream ring full", ALL, SW, 1), ("stream q ready", ALL, SW, 2), ("helper weights landed", WO + FF, [4], 4), ("K done", ALL, SW, 3), ("barrier2", ALL, SW, 4),
         ("ML done", ALL, SW, 5), ("V done", ALL, SW, 6), ("O published", ALL, [0], 7), ("wo: O polled", WO, SW, 8), ("wo: Y published", WO, [0], 9),
         ("ffn: Y polled", FF, [0, 1], 8), ("ffn: LN done", FF, SW, 9), ("ffn: Z published", FF, SW, 10), ("ffn: Z polled", FF, SW, 11), ("exit", ALL, [0, 1, 2, 3, 4], 15)]
```
